```python
import torch

def _softmax(x, axis=-1):
    return torch.softmax(x, dim=axis)

def _gelu(x):
    return torch.nn.functional.gelu(x, approximate='tanh')

def _silu(x):
    return torch.nn.functional.silu(x)

def _sigmoid(x):
    return torch.sigmoid(x)

def _layernorm(x, axis=-1, eps=1e-05):
    m = x.mean(dim=axis, keepdim=True)
    v = x.var(dim=axis, keepdim=True, unbiased=False)
    return (x - m) / torch.sqrt(v + eps)

def _scatter_add(tgt, idx, src, axis=0):
    return tgt.clone().index_add_(axis, idx, src)

def _segment_sum(src, seg, n):
    out = torch.zeros((n,) + src.shape[1:], dtype=src.dtype)
    return out.index_add_(0, seg, src)

def _pad(x, pw):
    flat = tuple((v for pair in reversed(pw) for v in pair))
    return torch.nn.functional.pad(x, flat)
kernel_name = 'adaLN_cond__ssm_conv_s4d__glu_gated_glu__prompt'

def setup_inputs():

    _w = lambda a: (lambda t: t.to(torch.bfloat16) if t.is_floating_point() else t)(torch.as_tensor(a))

    def _A_setup():
        Bsz, L, D, N = (1, 2048, 512, 128)
        return {'u': _w((lambda *s: torch.randn(*s, dtype=torch.bfloat16) * 0.05)(Bsz, L, D)), 'log_A_real': _w((lambda *s: torch.randn(*s, dtype=torch.bfloat16) * 3.2)(D, N) * 0.5), 'A_imag': _w((lambda *s: torch.randn(*s, dtype=torch.bfloat16) * 0.1)(D, N) * 3.14), 'C_real': _w((lambda *s: torch.randn(*s, dtype=torch.bfloat16) * 0.8)(D, N) / N ** 0.5), 'C_imag': _w((lambda *s: torch.randn(*s, dtype=torch.bfloat16) * 0.8)(D, N) / N ** 0.5), 'log_dt': _w((lambda *s: torch.randn(*s, dtype=torch.bfloat16) * 0.1)(D) * 0.5 - 4.0), 'D_skip': _w((lambda *s: torch.randn(*s, dtype=torch.bfloat16) * 0.1)(D))}
    _A_in = _A_setup()

    def _B_setup():
        B, S, D, F = (1, 2048, 512, 1376)
        return {'x': _w((lambda *s: torch.randn(*s, dtype=torch.bfloat16) * 0.05)(B, S, D)), 'w_gate': _w((lambda *s: torch.randn(*s, dtype=torch.bfloat16) * 0.1)(D, F)), 'w_up': _w((lambda *s: torch.randn(*s, dtype=torch.bfloat16) * 0.05)(D, F)), 'w_down': _w((lambda *s: torch.randn(*s, dtype=torch.bfloat16) * 0.05)(F, D))}
    _B_in = _B_setup()
    return {'A_u': _A_in['u'], 'A_log_A_real': _A_in['log_A_real'], 'A_A_imag': _A_in['A_imag'], 'A_C_real': _A_in['C_real'], 'A_C_imag': _A_in['C_imag'], 'A_log_dt': _A_in['log_dt'], 'A_D_skip': _A_in['D_skip'], 'B_x': _B_in['x'], 'B_w_gate': _B_in['w_gate'], 'B_w_up': _B_in['w_up'], 'B_w_down': _B_in['w_down'], 'c': _w((lambda *s: torch.randn(*s, dtype=torch.bfloat16) * 0.4)(1, 512) * 8.0), 'w_mod': _w((lambda *s: torch.randn(*s, dtype=torch.bfloat16) * 0.4)(512, 6 * 512) * 512 ** (-0.5) * 8.0)}

def reference(A_u, A_log_A_real, A_A_imag, A_C_real, A_C_imag, A_log_dt, A_D_skip, B_x, B_w_gate, B_w_up, B_w_down, c, w_mod):

    def _A_ref(u, log_A_real, A_imag, C_real, C_imag, log_dt, D_skip):
        L = u.shape[1]
        dt = torch.exp(log_dt)
        A = -torch.exp(log_A_real) + 1j * A_imag
        C = (C_real + 1j * C_imag) * dt[:, None]
        pos = (lambda x, dt: x.to(dt))(torch.arange(L), log_dt.dtype)
        P = torch.exp((A * dt[:, None])[:, :, None] * pos[None, None, :])
        K = 2.0 * torch.einsum('dn,dnl->dl', C, P).real
        L2 = 2 * L
        u_t = (lambda x, *d: x.permute(*d))(u, 0, 2, 1)
        Kf = (lambda x, *a, **k: torch.fft.rfft(x.float(), *a, **k))(K, L2)
        Uf = (lambda x, *a, **k: torch.fft.rfft(x.float(), *a, **k))(u_t, L2)
        y = (lambda x, *a, **k: torch.fft.irfft(x, *a, **k).to(torch.bfloat16))(Uf * Kf[None, :, :], L2)[:, :, :L]
        y = (lambda x, *d: x.permute(*d))(y, 0, 2, 1)
        return y + u * D_skip[None, None, :]

    def _B_ref(x, w_gate, w_up, w_down):
        g = torch.einsum('bsd,df->bsf', x, w_gate)
        u = torch.einsum('bsd,df->bsf', x, w_up)
        h = _sigmoid(g) * u
        return torch.einsum('bsf,fd->bsd', h, w_down)
    x = A_u
    mod = (_silu(c) @ w_mod).reshape(c.shape[0], 6, 1, -1)
    sa, ca, ga, sb, cb, gb = (mod[:, 0].clone(), mod[:, 1].clone(), mod[:, 2].clone(), mod[:, 3].clone(), mod[:, 4].clone(), mod[:, 5].clone())
    h = _layernorm(x, axis=-1) * (1 + ca) + sa
    x = x + ga * _A_ref(h, A_log_A_real, A_A_imag, A_C_real, A_C_imag, A_log_dt, A_D_skip)
    h = _layernorm(x, axis=-1) * (1 + cb) + sb
    x = x + gb * _B_ref(h, B_w_gate, B_w_up, B_w_down)
    return x
```

```python
class Asm:
    def __init__(self):
        self.lines = []
        self._lbl = 0
    def __call__(self, s=''):
        for ln in s.split('\n'):
            self.lines.append(ln)
    def label(self, name):
        self.lines.append(f'{name}:')
    def newlabel(self, base='L'):
        self._lbl += 1
        return f'{base}_{self._lbl}'
    def text(self):
        return '\n'.join(self.lines) + '\n'

def kernel_header(name):
    return f'''.text
.globl {name}
.p2align 8
.type {name},@function
{name}:'''

def kernel_desc(name, vgpr, sgpr=102, accum=None, ky=False):
    if accum is None:
        accum = min(256, (vgpr + 3) // 4 * 4)
    return f'''.section .rodata,"a"
.p2align 6
.amdhsa_kernel {name}
  .amdhsa_next_free_vgpr {vgpr}
  .amdhsa_next_free_sgpr {sgpr}
  .amdhsa_accum_offset {accum}
  .amdhsa_group_segment_fixed_size 0
  .amdhsa_kernarg_size 128
  .amdhsa_user_sgpr_count 2
  .amdhsa_user_sgpr_kernarg_segment_ptr 1
  .amdhsa_system_sgpr_workgroup_id_x 1
  .amdhsa_float_denorm_mode_32 3
  .amdhsa_float_denorm_mode_16_64 3
.end_amdhsa_kernel'''

def v(i, n=1):
    return f'v{i}' if n == 1 else f'v[{i}:{i+n-1}]'
def a(i, n=1):
    return f'a{i}' if n == 1 else f'a[{i}:{i+n-1}]'
def s(i, n=1):
    return f's{i}' if n == 1 else f's[{i}:{i+n-1}]'
```

```python
import re
REG = re.compile(r'(?<![\w.])([vas])(?:(\d+)|\[(\d+):(\d+)\])(?![\w])')
TRANS = ('v_exp_f32','v_log_f32','v_rcp_f32','v_rsq_f32','v_sqrt_f32','v_sin_f32','v_cos_f32','v_rcp_iflag_f32')
def regs_of(tok):
    out = set()
    for m in REG.finditer(tok):
        k = m.group(1)
        if m.group(2) is not None: out.add((k, int(m.group(2))))
        else:
            for i in range(int(m.group(3)), int(m.group(4))+1): out.add((k, i))
    if re.search(r'\bvcc\b', tok): out |= {('s','vcc')}
    if re.search(r'\bvcc_(lo|hi)\b', tok): out |= {('s','vcc')}
    if re.search(r'\bm0\b', tok): out |= {('s','m0')}
    if re.search(r'\bexec(_lo|_hi)?\b', tok): out |= {('s','exec')}
    return out
def split_ops(rest):
    ops = []; depth = 0; cur = ''
    for ch in rest:
        if ch == '[': depth += 1
        if ch == ']': depth -= 1
        if ch == ',' and depth == 0:
            ops.append(cur.strip()); cur = ''
        else: cur += ch
    if cur.strip(): ops.append(cur.strip())
    return ops
class I:
    pass
def parse(line):
    s = line.split(';')[0].split('//')[0].strip()
    if not s or s.endswith(':') or s.startswith('.'): return None
    m = re.match(r'(\S+)\s*(.*)', s)
    mn, rest = m.group(1), m.group(2)
    ops = split_ops(rest)
    x = I(); x.mn = mn; x.text = s
    base = re.sub(r'_(e32|e64|dpp|sdwa)$', '', mn)
    x.base = base
    x.dst = set(); x.src = set(); x.srcC = set(); x.srcAB = set(); x.store_data = set()
    x.valu = mn.startswith('v_') and not mn.startswith('v_mfma')
    x.mfma = mn.startswith('v_mfma')
    x.salu = mn.startswith('s_')
    x.vmem = mn.startswith(('buffer_', 'global_', 'flat_'))
    x.ds = mn.startswith('ds_')
    x.dpp = mn.endswith('_dpp') or 'quad_perm' in s or 'row_' in s or 'wave_sh' in s or 'wave_ro' in s
    x.trans = base in TRANS
    x.dot = base.startswith('v_dot')
    x.perml = base.startswith('v_permlane')
    x.rdlane = base in ('v_readlane_b32', 'v_readfirstlane_b32')
    x.ldsdma = x.vmem and (re.search(r'\blds\b', s) is not None or 'load_lds' in mn)
    x.nop = 0
    if mn == 's_nop': x.nop = int(ops[0], 0) + 1
    first = [re.sub(r'\s+(offen|offset|op_sel|neg_|row_|quad_perm|sc0|sc1|nt|lds|bank_mask|bound_ctrl|clamp|dst_sel|src0_sel|cbsz|idxen).*', '', o) for o in ops]
    R = [regs_of(o) for o in first]
    if x.mfma:
        x.dst = R[0]; x.srcAB = R[1] | R[2]; x.srcC = R[3]; x.src = x.srcAB | x.srcC
        x.passes = 8 if '32x32' in mn else 4
    elif x.valu:
        if x.perml:
            x.dst = R[0] | R[1]; x.src = R[0] | R[1]
        elif base.startswith('v_cmp'):
            x.dst = R[0]; x.src = set().union(*R[1:])
        elif base in ('v_add_co_u32','v_sub_co_u32','v_addc_co_u32','v_subb_co_u32'):
            x.dst = R[0] | R[1]; x.src = set().union(*R[2:])
        elif base == 'v_nop':
            pass
        else:
            x.dst = R[0]; x.src = set().union(*R[1:]) if len(R) > 1 else set()
            if base in ('v_fmac_f32','v_dot2c_f32_bf16','v_writelane_b32') or x.dpp: x.src |= R[0]
            if x.dot and len(R) == 4: x.srcC = R[3]; x.srcAB = R[1] | R[2]
    elif x.vmem:
        if x.ldsdma:
            x.src = set().union(*R) | {('s','m0')}
        elif 'load' in mn:
            x.dst = R[0]; x.src = set().union(*R[1:])
        elif mn.startswith('buffer_wbl2') or mn.startswith('buffer_inv'):
            pass
        else:
            x.src = set().union(*R)
            data = R[0] if mn.startswith('buffer_') else R[1]
            if 'x3' in mn or 'x4' in mn: x.store_data = data
            if 'atomic' in mn and ' sc0' in s: x.dst = R[0]
    elif x.ds:
        if mn.startswith(('ds_read', 'ds_bpermute', 'ds_permute', 'ds_swizzle')):
            x.dst = R[0]; x.src = set().union(*R[1:])
        else:
            x.src = set().union(*R)
    elif x.salu:
        if mn.startswith(('s_cmp', 's_cbranch', 's_branch', 's_waitcnt', 's_barrier', 's_nop', 's_sleep', 's_endpgm', 's_setprio', 's_bitcmp')):
            x.src = set().union(*R) if R else set()
        else:
            x.dst = R[0] if R else set(); x.src = set().union(*R[1:]) if len(R) > 1 else set()
            if 'saveexec' in mn: x.dst |= {('s','exec')}
    return x
def isv(S): return {r for r in S if r[0] in 'va'}
def iss(S): return {r for r in S if r[0] == 's'}
def need(p, c):
    n = 0
    pv = isv(p.dst); ps = iss(p.dst)
    if p.valu:
        if c.mfma and pv & c.src: n = max(n, 2)
        if c.valu and c.dpp and pv & c.src: n = max(n, 2)
        if c.perml and pv & c.src: n = max(n, 2)
        if c.rdlane and pv & c.src: n = max(n, 1)
        if p.trans and c.valu and not c.trans and pv & c.src: n = max(n, 1)
        if p.trans and (c.ds or c.vmem) and pv & c.src: n = max(n, 1)
        if ps:
            if c.vmem and ps & c.src: n = max(n, 5)
            if c.valu and ps & c.src: n = max(n, 4 if (c.rdlane or c.base == 'v_writelane_b32') else 2)
            if c.salu and ps & c.src: n = max(n, 1)
        if p.dot:
            if c.dot and c.base == p.base:
                if pv & c.srcAB: n = max(n, 3)
            elif pv & (c.src | c.dst): n = max(n, 3)
    if p.mfma:
        big = 12 if p.passes == 8 else 8
        if c.mfma:
            if pv & c.srcAB: n = max(n, big)
            if pv & c.srcC and not (pv == c.srcC and p.passes == c.passes): n = max(n, big - 2)
            if pv & c.dst and not (pv == c.srcC): n = max(n, big)
        elif (c.valu or c.vmem or c.ds) and pv & (c.src | c.dst): n = max(n, big)
        if c.valu and p.srcC & c.dst: n = max(n, 7 if p.passes == 8 else 3)
    if p.salu and ('s','m0') in p.dst and c.ldsdma: n = max(n, 1)
    if p.store_data and (c.valu or c.mfma) and p.store_data & c.dst: n = max(n, 2)
    if p.store_data and (c.vmem or c.ds) and p.store_data & c.dst: n = max(n, 1)
    return n
def fix(text, verbose=False):
    out = []; hist = []
    ninserted = 0
    for line in text.split('\n'):
        x = parse(line)
        if x is None:
            out.append(line); continue
        w = 0
        for p, d in hist:
            w = max(w, need(p, x) - d)
        if w > 0:
            ninserted += w
            ww = w
            while ww > 0:
                k = min(ww, 16); out.append(f's_nop {k-1}'); ww -= k
            hist = [(p, d + w) for p, d in hist]
        out.append(line)
        inc = x.nop if x.nop else 1
        hist = [(p, d + inc) for p, d in hist if d + inc < 20]
        if x.mn in ('s_endpgm', 's_branch'): hist = []
        else: hist.append((x, 0))
    if verbose: print('wait states inserted:', ninserted)
    return '\n'.join(out)
```

```python
import sys, struct, math
from asmlib import *
import hazard

NAME = 'adaLN_cond__ssm_conv_s4d__glu_gated_glu__prompt_kernel'

def f2u(x):
    return struct.unpack('<I', struct.pack('<f', x))[0]
def hx(x):
    return f'0x{x & 0xffffffff:08x}'

EPOCH = 0x0
WFLAG = 0x1000
ST    = 0x8000
CTR   = 0x10000
MODP  = 0x20000
XT    = 0x100000
X1T   = 0x300000
WP    = 0x500000
WDP   = 0x800000
HH    = 0xA00000
DBG   = 0x1000000
TSB   = 0x4000000
WS_BYTES = 0x10000000
OOB = 0x40000000

KCP = 4160
L_KC = 0
L_H = L_KC + 2 * 4 * KCP
HP = 4608
L_UV = L_H + 2 * HP
UVP = 528
L_YP = L_UV
L_STG = L_UV + 2 * 64 * UVP
L_XL = L_STG
assert L_STG + 16384 <= 131072
L_SC = 131072
L_SB = L_SC + 2048
L_GB = L_SB + 1024
L_SILU = L_GB + 512
L_S2 = L_SILU + 256
L_WM = 131072 + 8192
L_WD = L_WM + 16384
LDS_BYTES = 163840
assert L_WD + 8192 <= LDS_BYTES

WS, XS, WGS, WUS, WDS, WMS, OUTS = 's[4:7]', 's[8:11]', 's[12:15]', 's[16:19]', 's[20:23]', 's[24:27]', 's[28:31]'
sTAG, sWAVE, sD0, sMT, sNT, sXCD, sIDX = 's32', 's33', 's34', 's35', 's50', 's51', 's52'
sT = [f's{i}' for i in range(53, 60)]
sTB = [f's{i}' for i in range(60, 64)]
sMOD = [f's{i}' for i in range(64, 70)]
sSPIN = 's70'
sCOL = 's71'
sM1, sM2 = 's[72:73]', 's[74:75]'
sRQ = 's3'
TS0 = 76

vTID, vLANE, vL16, vL, vQ = 'v0', 'v1', 'v2', 'v3', 'v4'
SPIN_MAX = 1 << 20


class Cnt:
    def __init__(self, A, name, maxv):
        self.A, self.name, self.maxv, self.q = A, name, maxv, []
        self.seen = set()
    def issue(self, tag=None):
        self.q.append(tag); self.seen.add(tag)
    def wait(self, tag):
        assert tag in self.seen, tag
        idx = [i for i, t in enumerate(self.q) if t == tag]
        if not idx: return
        n = len(self.q) - 1 - idx[-1]
        n = min(n, self.maxv)
        self.A(f's_waitcnt {self.name}({n})')
        self.q = self.q[len(self.q) - n:] if n else []
    def waitall(self):
        self.A(f's_waitcnt {self.name}(0)')
        self.q = []
    def reset(self):
        self.q = []


class Gen:
    def __init__(self, stop=None, ts=False):
        self.A = Asm()
        self.stop = stop
        self.ts = ts
        self.nts = 0
        self.vm = Cnt(self.A, 'vmcnt', 63)
        self.lg = Cnt(self.A, 'lgkmcnt', 15)

    def stamp(self, i):
        if self.ts:
            self.A(f's_memrealtime s[{TS0+2*i}:{TS0+2*i+1}]')
            self.A('s_waitcnt lgkmcnt(0)')
            self.lg.reset()

    def setexec(self, lo, hi=0):
        self.A(f's_mov_b32 exec_lo, {hx(lo)}')
        self.A(f's_mov_b32 exec_hi, {hx(hi)}')
    def execall(self):
        self.A('s_mov_b64 exec, -1')

    def spin_begin(self, name):
        A = self.A
        A(f's_mov_b32 {sSPIN}, 0')
        A.label(name)
    def spin_end(self, name):
        A = self.A
        A(f's_cbranch_vccz {name}_ok')
        A(f's_add_u32 {sSPIN}, {sSPIN}, 1')
        A(f's_cmp_lt_u32 {sSPIN}, {SPIN_MAX}')
        A(f's_cbranch_scc1 {name}')
        A.label(f'{name}_ok')

    def tag_issue(self, vreg):
        self.A(f'buffer_load_dword {vreg}, off, {WS}, 0 offset:{EPOCH} sc1')
        self.vm.issue('tag')
    def tag_finish(self, vreg):
        A = self.A
        A(f'v_readfirstlane_b32 {sTAG}, {vreg}')
        A(f's_mul_i32 {sTAG}, {sTAG}, 0x9E3779B1')
        A(f's_add_u32 {sTAG}, {sTAG}, 0x7F4A7C15')

    def rne_bf16_hi(self, dst, src):
        A = self.A
        A(f'v_cvt_pk_bf16_f32 {dst}, {src}, {src}')
        A(f'v_and_b32 {dst}, 0xffff0000, {dst}')

    def prologue(self):
        A = self.A
        A(kernel_header(NAME))
        A('s_cmp_ge_u32 s2, 256')
        A('s_cbranch_scc1 L_end')
        if self.ts: A(f's_memrealtime s[{TS0}:{TS0+1}]')
        A('s_load_dwordx2 s[4:5], s[0:1], 120')
        A('s_load_dwordx2 s[8:9], s[0:1], 0')
        A('s_load_dwordx8 s[36:43], s[0:1], 8')
        A('s_load_dwordx4 s[44:47], s[0:1], 40')
        A('s_load_dwordx2 s[12:13], s[0:1], 64')
        A('s_load_dwordx2 s[16:17], s[0:1], 72')
        A('s_load_dwordx2 s[20:21], s[0:1], 80')
        A('s_load_dwordx2 s[48:49], s[0:1], 88')
        A('s_load_dwordx2 s[24:25], s[0:1], 96')
        A('s_load_dwordx2 s[28:29], s[0:1], 104')
        for base, n in ((4, WS_BYTES), (8, 2097152), (12, 1409024), (16, 1409024), (20, 1409024), (24, 3145728), (28, 2097152)):
            A(f's_mov_b32 s{base+2}, {n}')
            A(f's_mov_b32 s{base+3}, 0x20000')
        A(f'v_lshrrev_b32 v5, 6, {vTID}')
        A(f'v_and_b32 {vLANE}, 63, {vTID}')
        A(f'v_readfirstlane_b32 {sWAVE}, v5')
        A(f'v_lshlrev_b32 {vL16}, 4, {vLANE}')
        A(f'v_and_b32 {vL}, 15, {vLANE}')
        A(f'v_lshrrev_b32 {vQ}, 4, {vLANE}')
        A(f's_and_b32 {sXCD}, s2, 7')
        A(f's_lshr_b32 {sIDX}, s2, 3')
        A(f's_lshl_b32 {sD0}, {sIDX}, 4')
        A(f's_add_u32 {sD0}, {sD0}, {sXCD}')
        A(f's_lshr_b32 {sT[0]}, {sXCD}, 1')
        A(f's_lshl_b32 {sT[0]}, {sT[0]}, 2')
        A(f's_lshr_b32 {sMT}, {sIDX}, 3')
        A(f's_add_u32 {sMT}, {sMT}, {sT[0]}')
        A(f's_and_b32 {sT[0]}, {sXCD}, 1')
        A(f's_lshl_b32 {sT[0]}, {sT[0]}, 3')
        A(f's_and_b32 {sNT}, {sIDX}, 7')
        A(f's_add_u32 {sNT}, {sNT}, {sT[0]}')
        A(f's_lshr_b32 {sRQ}, {sNT}, 2')
        A(f's_and_b32 {sCOL}, {sNT}, 3')
        A(f's_lshl_b32 {sCOL}, {sCOL}, 2')
        A(f's_add_u32 {sCOL}, {sCOL}, {sWAVE}')
        A('s_waitcnt lgkmcnt(0)')
        A(f's_cmp_eq_u32 {sWAVE}, 1')
        A('s_cbranch_scc1 L_w1')
        A(f's_cmp_ge_u32 {sWAVE}, 2')
        A('s_cbranch_scc1 L_kgen')

    def wave0(self):
        A, vm, lg = self.A, self.vm, self.lg
        vm.reset(); lg.reset()
        X = 32
        T = 64
        S = 96
        F = 128
        vE = 'v5'
        A(f's_lshl_b32 {sT[0]}, s2, 13')
        A(f's_add_u32 {sT[1]}, {sT[0]}, 4096')
        for r in range(8):
            A(f'buffer_load_dwordx4 {v(X+4*r,4)}, {vL16}, {XS}, {sT[r//4]} offen offset:{(r%4)*1024}')
            vm.issue('x')
        self.tag_issue(vE)
        A(f'v_mul_u32_u24 v6, 2752, {vQ}')
        A(f'v_lshl_add_u32 v6, {vL}, 4, v6')
        A(f's_lshr_b32 {sT[2]}, s2, 4')
        A(f's_mul_i32 {sT[2]}, {sT[2]}, {32*2752}')
        A(f's_and_b32 {sT[3]}, s2, 15')
        A(f's_mul_i32 {sT[3]}, {sT[3]}, 172')
        A(f's_add_u32 {sT[2]}, {sT[2]}, {sT[3]}')
        self.setexec(0x07ff07ff, 0x07ff07ff)
        for i in range(8):
            A(f's_mov_b32 m0, {L_STG + i*1024}')
            A(f'buffer_load_dwordx4 v6, {WGS}, {sT[2]} offen lds'); vm.issue('wslab')
            A(f's_mov_b32 m0, {L_STG + 8192 + i*1024}')
            A(f'buffer_load_dwordx4 v6, {WUS}, {sT[2]} offen lds'); vm.issue('wslab')
            if i < 7: A(f's_add_u32 {sT[2]}, {sT[2]}, {4*2752}')
        self.execall()
        A(f's_mov_b32 {sT[4]}, 0x05040100')
        A(f's_mov_b32 {sT[5]}, 0x07060302')
        A(f's_mov_b32 {sT[6]}, 0x3f803f80')
        A(f's_add_u32 {sT[0]}, {sT[0]}, {XT}')
        A(f's_add_u32 {sT[1]}, {sT[1]}, {XT}')
        A(f'v_lshrrev_b32 v7, 2, {vLANE}')
        A(f'v_lshlrev_b32 v7, 8, v7')
        A(f'v_and_b32 v8, 1, {vLANE}')
        A(f'v_lshl_add_u32 v7, v8, 13, v7')
        A(f'v_and_b32 v8, 2, {vLANE}')
        A(f'v_lshl_add_u32 v7, v8, 2, v7')
        A(f'v_add_u32 v7, {L_STG}, v7')
        A('v_mov_b32 v9, 0')
        A(f's_lshl_b32 {sT[2]}, s2, 8')
        A(f's_add_u32 {sT[2]}, {sT[2]}, {CTR}')
        vm.wait('tag')
        self.stamp(1)
        self.tag_finish(vE)
        for j in range(8):
            for e in range(4):
                A(f'v_perm_b32 {v(T+4*j+e)}, {v(X+4*(6-2*e)+j//2)}, {v(X+4*(7-2*e)+j//2)}, {sT[4+(j&1)]}')
            A(f'buffer_store_dwordx4 {v(T+4*j,4)}, {vL16}, {WS}, {sT[j//4]} offen offset:{(j%4)*1024} sc1')
            vm.issue('xt')
        self.setexec(1)
        A(f'buffer_store_dword v9, off, {WS}, {sT[2]} sc1'); vm.issue('xt')
        self.execall()
        def sreg(slot, g): return S + 4*slot + g
        for jj in range(4):
            for g in range(4):
                for slot in range(4):
                    row = (7 - 2*g) if slot % 2 == 0 else (6 - 2*g)
                    x = v(X + 4*row + jj)
                    o = x if slot >= 2 else sT[6]
                    c = '0' if jj == 0 else v(sreg(slot, g))
                    A(f'v_dot2_f32_bf16 {v(sreg(slot,g))}, {x}, {o}, {c}')
        for slot in range(4):
            for g in range(2):
                A(f'v_permlane32_swap_b32 {v(sreg(slot,g))}, {v(sreg(slot,g+2))}')
        for slot in range(4):
            for g in range(2):
                A(f'v_add_f32 {v(sreg(slot,g))}, {v(sreg(slot,g))}, {v(sreg(slot,g+2))}')
        for slot in range(4):
            A(f'v_permlane16_swap_b32 {v(sreg(slot,0))}, {v(sreg(slot,1))}')
        for slot in range(4):
            A(f'v_add_f32 {v(sreg(slot,0))}, {v(sreg(slot,0))}, {v(sreg(slot,1))}')
        for sh in (8, 4, 2, 1):
            for slot in range(4):
                r = v(sreg(slot, 0))
                A(f'v_add_f32_dpp {r}, {r}, {r} row_ror:{sh} row_mask:0xf bank_mask:0xf')
        G = 112
        for k in range(2):
            su, sq = v(sreg(k, 0)), v(sreg(2+k, 0))
            A(f'v_mul_f32 {su}, {hx(f2u(1/512))}, {su}')
            A(f'v_mul_f32 {sq}, {hx(f2u(1/512))}, {sq}')
            A(f'v_fma_f32 {sq}, -{su}, {su}, {sq}')
            A(f'v_max_f32 {sq}, 0, {sq}')
            A(f'v_add_f32 {sq}, {hx(f2u(1e-5))}, {sq}')
            A(f'v_rsq_f32 {v(G+k)}, {sq}')
        for k in range(2):
            A(f'v_mul_f32 {v(G+2+k)}, {v(sreg(k,0))}, {v(G+k)}')
            A(f'v_sub_f32 {v(G+2+k)}, 0, {v(G+2+k)}')
        self.tagbytes()
        A('v_mov_b32 v10, 0xffffff00')
        for k in range(4):
            A(f'v_and_or_b32 {v(G+k)}, {v(G+k)}, v10, {sTB[k]}')
        vm.wait('wslab')
        for u in range(11):
            A(f'ds_read_b64_tr_b16 {v(F+4*u,2)}, v7 offset:{u*16}'); lg.issue(u)
            A(f'ds_read_b64_tr_b16 {v(F+4*u+2,2)}, v7 offset:{u*16+4096}'); lg.issue(u)
        A(f's_and_b32 {sT[2]}, s2, 15')
        A(f's_lshl_b32 {sT[2]}, {sT[2]}, 4')
        A(f's_lshr_b32 {sT[3]}, s2, 4')
        A(f's_add_u32 {sT[2]}, {sT[2]}, {sT[3]}')
        A(f's_mul_i32 {sT[3]}, {sT[2]}, {11*1024}')
        A(f's_add_u32 {sT[3]}, {sT[3]}, {WP}')
        for u in range(11):
            lg.wait(u)
            if u == 10:
                self.setexec(0xcc00cc00, 0xcc00cc00)
                for k in range(4): A(f'v_mov_b32 {v(F+40+k)}, 0')
                self.setexec(0x04000400, 0x04000400)
                for k in range(4): A(f'v_mov_b32 {v(F+40+k)}, {sT[6]}')
                self.execall()
            A(f'buffer_store_dwordx4 {v(F+4*u,4)}, {vL16}, {WS}, {sT[3]} offen offset:{(u%4)*1024} sc1')
            vm.issue('wp')
            if u % 4 == 3: A(f's_add_u32 {sT[3]}, {sT[3]}, 4096')
        A(f'v_lshlrev_b32 v8, 12, {vQ}')
        A(f's_lshl_b32 {sT[3]}, s2, 4')
        A(f's_add_u32 {sT[3]}, {sT[3]}, {ST}')
        vm.wait('xt')
        self.setexec(0x00010001, 0x00010001)
        A(f'buffer_store_dwordx4 {v(G,4)}, v8, {WS}, {sT[3]} offen sc1'); vm.issue('st')
        self.execall()
        self.stamp(2)
        A(f's_and_b32 {sT[3]}, {sT[2]}, 15')
        A(f's_lshr_b32 {sT[2]}, {sT[2]}, 4')
        A(f's_lshl_b32 {sT[2]}, {sT[2]}, 7')
        A(f's_lshl_b32 {sT[3]}, {sT[3]}, 2')
        A(f's_add_u32 {sT[2]}, {sT[2]}, {sT[3]}')
        A(f's_add_u32 {sT[2]}, {sT[2]}, {WFLAG}')
        A(f'v_mov_b32 v9, {sTAG}')
        vm.wait('wp')
        self.setexec(1)
        A(f'buffer_store_dword v9, off, {WS}, {sT[2]} sc1')
        self.execall()
        A('s_branch L_hprep')

    def tagbytes(self):
        A = self.A
        A(f's_and_b32 {sTB[0]}, {sTAG}, 0xff')
        A(f's_bfe_u32 {sTB[1]}, {sTAG}, 0x80008')
        A(f's_bfe_u32 {sTB[2]}, {sTAG}, 0x80010')
        A(f's_lshr_b32 {sTB[3]}, {sTAG}, 24')

    def wave1(self):
        A, vm, lg = self.A, self.vm, self.lg
        vm.reset(); lg.reset()
        A.label('L_w1')
        vE, vC = 'v5', 'v6'
        A(f's_and_b32 {sT[0]}, s2, 3')
        A(f's_lshl_b32 {sT[1]}, {sT[0]}, 8')
        A(f'v_lshl_add_u32 v7, {vLANE}, 2, {sT[1]}')
        A(f'global_load_dword {vC}, v7, s[48:49]'); vm.issue('c')
        self.tag_issue(vE)
        A(f'v_lshrrev_b32 v8, 3, {vLANE}')
        A(f'v_mul_u32_u24 v8, 6144, v8')
        A(f'v_and_b32 v9, 7, {vLANE}')
        A(f'v_lshl_add_u32 v8, v9, 4, v8')
        A(f's_cmp_lt_u32 s2, 192')
        A(f's_cselect_b32 {sT[6]}, 0, {OOB}')
        A(f'v_add_u32 v8, {sT[6]}, v8')
        A(f's_mul_i32 {sT[1]}, {sT[0]}, {128*6144}')
        A(f's_lshr_b32 {sT[2]}, s2, 2')
        A(f's_lshl_b32 {sT[3]}, {sT[2]}, 7')
        A(f's_add_u32 {sT[1]}, {sT[1]}, {sT[3]}')
        for i in range(16):
            A(f's_mov_b32 m0, {L_WM + i*1024}')
            A(f'buffer_load_dwordx4 v8, {WMS}, {sT[1]} offen lds'); vm.issue('wm')
            if i < 15: A(f's_add_u32 {sT[1]}, {sT[1]}, {8*6144}')
        A(f's_sub_u32 {sT[3]}, s2, 80')
        A(f's_cmp_ge_u32 s2, 80')
        A(f's_cselect_b32 {sT[5]}, 0, {OOB}')
        A(f's_cselect_b32 {sT[3]}, {sT[3]}, 0')
        A(f's_lshr_b32 {sT[4]}, {sT[3]}, 2')
        A(f's_lshl_b32 {sT[4]}, {sT[4]}, 5')
        A(f'v_add_u32 v10, {sT[4]}, {vQ}')
        A(f's_and_b32 {sT[4]}, {sT[3]}, 3')
        A(f's_lshl_b32 {sT[4]}, {sT[4]}, 8')
        A(f's_add_u32 {sT[4]}, {sT[4]}, {sT[5]}')
        A(f'v_lshl_add_u32 v11, {vL}, 4, {sT[4]}')
        A(f'v_mov_b32 v15, {OOB}')
        for i in range(8):
            A(f'v_mul_u32_u24 v12, 745, v10')
            A(f'v_lshrrev_b32 v12, 16, v12')
            A(f'v_mul_u32_u24 v13, 88, v12')
            A(f'v_sub_u32 v13, v10, v13')
            A(f'v_cmp_gt_u32 vcc, 86, v13')
            A(f'v_lshlrev_b32 v12, 1, v12')
            A(f'v_sub_u32 v12, v10, v12')
            A(f'v_lshl_add_u32 v12, v12, 10, v11')
            A(f'v_cndmask_b32 v12, v15, v12, vcc')
            A(f's_mov_b32 m0, {L_WD + i*1024}')
            A(f'v_add_u32 v10, 4, v10')
            A(f'buffer_load_dwordx4 v12, {WDS}, 0 offen lds'); vm.issue('wd')
        vm.wait('tag')
        self.tag_finish(vE)
        A(f'v_lshlrev_b32 v12, 16, {vC}')
        A(f'v_and_b32 v13, 0xffff0000, {vC}')
        for r, t in (('v12', 'v14'), ('v13', 'v16')):
            A(f'v_mul_f32 {t}, {hx(f2u(-math.log2(math.e)))}, {r}')
            A(f'v_exp_f32 {t}, {t}')
        for r, t, rc, qq in (('v12', 'v14', 'v17', 'v19'), ('v13', 'v16', 'v18', 'v20')):
            A(f'v_add_f32 {t}, 1.0, {t}')
            A(f'v_min_f32 {t}, {hx(f2u(2.0**126))}, {t}')
            A(f'v_rcp_f32 {rc}, {t}')
        for r, t, rc, qq in (('v12', 'v14', 'v17', 'v19'), ('v13', 'v16', 'v18', 'v20')):
            A(f'v_mul_f32 {qq}, {r}, {rc}')
            A(f'v_fma_f32 {r}, -{qq}, {t}, {r}')
            A(f'v_fma_f32 {r}, {r}, {rc}, {qq}')
        A('v_cvt_pk_bf16_f32 v12, v12, v13')
        A(f'v_lshlrev_b32 v13, 2, {vLANE}')
        A(f'v_add_u32 v13, {L_SILU}, v13')
        A('ds_write_b32 v13, v12')
        A(f'v_lshlrev_b32 v13, 4, {vQ}')
        A(f'v_add_u32 v13, {L_SILU}, v13')
        SA = 32
        for st in range(4):
            A(f'ds_read_b128 {v(SA+4*st,4)}, v13 offset:{st*64}')
        A(f'v_lshrrev_b32 v14, 2, {vL}')
        A(f'v_lshl_add_u32 v14, {vQ}, 3, v14')
        A(f'v_and_b32 v16, 3, {vLANE}')
        A(f'v_lshlrev_b32 v17, 7, v14')
        A(f'v_lshl_add_u32 v17, v16, 3, v17')
        A(f'v_add_u32 v17, {L_WM}, v17')
        A(f'v_lshlrev_b32 v18, 8, v14')
        A(f'v_lshl_add_u32 v18, v16, 4, v18')
        A(f'v_add_u32 v18, {L_WD}, v18')
        lg.waitall()
        vm.wait('wm')
        self.stamp(1)
        BF = 64
        D = 48
        order = [(st, ct) for st in range(4) for ct in range(4)]
        for n, (st, ct) in enumerate(order):
            for hf in range(2):
                A(f'ds_read_b64_tr_b16 {v(BF+4*n+2*hf,2)}, v17 offset:{st*4096 + hf*512 + ct*32}'); lg.issue(n)
            if n >= 4:
                m = n - 4; st2, ct2 = order[m]
                lg.wait(m)
                A(f'v_mfma_f32_16x16x32_bf16 {v(D+4*ct2,4)}, {v(SA+4*st2,4)}, {v(BF+4*m,4)}, {"0" if st2 == 0 else v(D+4*ct2,4)}')
        for m in range(12, 16):
            st2, ct2 = order[m]
            lg.wait(m)
            A(f'v_mfma_f32_16x16x32_bf16 {v(D+4*ct2,4)}, {v(SA+4*st2,4)}, {v(BF+4*m,4)}, {v(D+4*ct2,4)}')
        A(f's_mul_i32 {sT[1]}, {sT[0]}, 24576')
        A(f's_lshl_b32 {sT[2]}, {sT[2]}, 9')
        A(f's_add_u32 {sT[1]}, {sT[1]}, {sT[2]}')
        A(f's_add_u32 {sT[1]}, {sT[1]}, {MODP}')
        A(f'v_lshl_add_u32 v12, {vLANE}, 3, {sT[6]}')
        A(f'v_mov_b32 v21, {sTAG}')
        A(f'v_mov_b32 v20, {v(D)}')
        self.setexec(0xffff0000, 0)
        A(f'v_mov_b32 v20, {v(D+4)}')
        self.setexec(0, 0x0000ffff)
        A(f'v_mov_b32 v20, {v(D+8)}')
        self.setexec(0, 0xffff0000)
        A(f'v_mov_b32 v20, {v(D+12)}')
        self.execall()
        A(f'buffer_store_dwordx2 v[20:21], v12, {WS}, {sT[1]} offen sc1'); vm.issue('modp')
        self.stamp(2)
        vm.wait('wd')
        F = 128
        for n in range(8):
            pp, T = n >> 1, n & 1
            for hf in range(2):
                A(f'ds_read_b64_tr_b16 {v(F+4*n+2*hf,2)}, v18 offset:{hf*1024 + pp*64 + T*8}'); lg.issue(n)
        A(f's_lshl_b32 {sT[3]}, {sT[3]}, 13')
        A(f's_add_u32 {sT[3]}, {sT[3]}, {WDP}')
        A(f's_add_u32 {sT[4]}, {sT[3]}, 4096')
        A(f'v_add_u32 v12, {sT[5]}, {vL16}')
        for n in range(8):
            lg.wait(n)
            A(f'buffer_store_dwordx4 {v(F+4*n,4)}, v12, {WS}, {sT[3+n//4]} offen offset:{(n%4)*1024} sc1'); vm.issue('wdp')
        self.tagbytes()

    def modfetch_addr(self, va):
        A = self.A
        A(f'v_and_b32 {va}, 3, {vLANE}')
        A(f'v_mul_u32_u24 {va}, 24576, {va}')
        A(f'v_lshrrev_b32 v31, 3, {vLANE}')
        A(f'v_min_u32 v31, 2, v31')
        A(f'v_lshl_add_u32 {va}, v31, 12, {va}')
        A(f'v_and_b32 v31, 4, {vLANE}')
        A(f'v_lshl_add_u32 {va}, v31, 4, {va}')
        A(f's_lshl_b32 {sT[6]}, {sD0}, 3')
        A(f's_add_u32 {sT[6]}, {sT[6]}, {MODP}')
    def modfetch_finish(self, vp):
        A = self.A
        r = v(vp)
        A(f'v_add_f32_dpp {r}, {r}, {r} quad_perm:[1,0,3,2] row_mask:0xf bank_mask:0xf')
        A(f'v_add_f32_dpp {r}, {r}, {r} quad_perm:[2,3,0,1] row_mask:0xf bank_mask:0xf')
        self.rne_bf16_hi(r, r)
        r2 = v(vp+1)
        A(f'v_add_f32 {r2}, 1.0, {r}')
        self.rne_bf16_hi(r2, r2)
        for k in range(6):
            A(f'v_readlane_b32 {sMOD[k]}, {r2 if k in (2,3) else r}, {4*k}')

    def hprep(self):
        A, vm, lg = self.A, self.vm, self.lg
        A.label('L_hprep')
        vm.reset(); lg.reset()
        SG = 32
        XC = 64
        HO = 80
        MP = 24
        A(f'v_lshlrev_b32 v6, 4, {vTID}')
        self.modfetch_addr('v7')
        A(f's_mov_b32 {sT[0]}, {ST}')
        A(f's_mov_b32 {sT[1]}, {ST+4096}')
        A(f's_mov_b32 {sT[2]}, {ST+8192}')
        A(f's_mov_b32 {sT[3]}, {ST+12288}')
        A(f'v_lshlrev_b32 v8, 13, {vTID}')
        A(f's_lshl_b32 {sT[4]}, {sXCD}, 10')
        A(f's_lshl_b32 {sT[5]}, {sIDX}, 5')
        A(f's_add_u32 {sT[4]}, {sT[4]}, {sT[5]}')
        A(f's_add_u32 {sT[4]}, {sT[4]}, {XT}')
        A(f's_add_u32 {sT[5]}, {sT[4]}, {128*8192}')
        self.spin_begin('L_sp_st')
        for y in range(2):
            for g in range(4):
                A(f'buffer_load_dwordx4 {v(SG+16*y+4*g,4)}, v6, {WS}, {sT[g]} offen offset:{y*2048} sc1')
        A('s_waitcnt vmcnt(0)')
        for n in range(32):
            A(f'v_xor_b32 {v(SG+n)}, {sTB[n%4]}, {v(SG+n)}')
        A(f'v_or_b32 v9, {v(SG)}, {v(SG+1)}')
        for n in range(2, 32, 2):
            A(f'v_or3_b32 v9, {v(SG+n)}, {v(SG+n+1)}, v9')
        A('v_and_b32 v9, 0xff, v9')
        A('v_cmp_ne_u32 vcc, 0, v9')
        A('s_nop 4')
        self.spin_end('L_sp_st')
        self.stamp(3)
        for y in range(2):
            for ch in range(2):
                A(f'buffer_load_dwordx4 {v(XC+8*y+4*ch,4)}, v8, {WS}, {sT[4+y]} offen offset:{ch*16}')
        self.spin_begin('L_sp_m0')
        A(f'buffer_load_dwordx2 {v(MP,2)}, v7, {WS}, {sT[6]} offen sc1')
        A('s_waitcnt vmcnt(0)')
        A(f'v_cmp_ne_u32 vcc, {sTAG}, {v(MP+1)}')
        A('s_nop 4')
        self.spin_end('L_sp_m0')
        self.stamp(4)
        self.modfetch_finish(MP)
        A(f'v_add_u32 v9, {L_H + 512}, v6')
        A(f'v_add_u32 v10, {L_XL}, v6')
        CS = 12
        for ch in range(2):
            A(f'v_mov_b32 {v(CS+2*ch)}, {sMOD[2+ch]}')
            A(f'v_mov_b32 {v(CS+2*ch+1)}, {sMOD[ch]}')
        for y in range(2):
            for ch in range(2):
                xb = XC + 8*y + 4*ch; hb = HO + 8*y + 4*ch
                A(f'ds_write_b128 v10, {v(xb,4)} offset:{ch*4096 + y*2048}')
                t = 16
                for e in range(4):
                    A(f'v_lshlrev_b32 {v(t+2*e)}, 16, {v(xb+e)}')
                    A(f'v_and_b32 {v(t+2*e+1)}, 0xffff0000, {v(xb+e)}')
                for e in range(4):
                    g = SG + 16*y + 4*e
                    A(f'v_pk_fma_f32 {v(t+2*e,2)}, {v(t+2*e,2)}, {v(g,2)}, {v(g+2,2)}')
                for e in range(4):
                    A(f'v_pk_fma_f32 {v(t+2*e,2)}, {v(t+2*e,2)}, {v(CS+2*ch,2)}, {v(CS+2*ch,2)} op_sel:[0,0,1] op_sel_hi:[1,0,1]')
                for e in range(4):
                    A(f'v_cvt_pk_bf16_f32 {v(hb+e)}, {v(t+2*e)}, {v(t+2*e+1)}')
                A(f'ds_write_b128 v9, {v(hb,4)} offset:{ch*HP + y*2048}')
        A('s_branch L_join1')

    def kgen(self):
        A, vm, lg = self.A, self.vm, self.lg
        A.label('L_kgen')
        vm.reset(); lg.reset()
        vE = 'v5'
        sCH, sD = sT[0], sT[1]
        A(f's_sub_u32 {sCH}, {sWAVE}, 2')
        A(f's_lshl_b32 {sD}, {sCH}, 3')
        A(f's_add_u32 {sD}, {sD}, {sD0}')
        A(f's_lshl_b32 {sT[2]}, {sD}, 8')
        A(f'v_lshl_add_u32 v6, {vLANE}, 2, {sT[2]}')
        A(f's_lshl_b32 {sT[2]}, {sD}, 1')
        A(f'v_mov_b32 v7, {sT[2]}')
        LA, AI, CR, CI, LD, DS_ = 'v8', 'v9', 'v10', 'v11', 'v12', 'v13'
        A(f'global_load_ushort {LD}, v7, s[44:45]'); vm.issue('p')
        A(f'global_load_dword {LA}, v6, s[36:37]'); vm.issue('p')
        A(f'global_load_dword {AI}, v6, s[38:39]'); vm.issue('p')
        A(f'global_load_dword {CR}, v6, s[40:41]'); vm.issue('p')
        A(f'global_load_dword {CI}, v6, s[42:43]'); vm.issue('p')
        A(f'global_load_ushort {DS_}, v7, s[46:47]'); vm.issue('p')
        self.tag_issue(vE)
        A(f's_mul_i32 {sT[2]}, {sCH}, {4*KCP}')
        A(f's_mul_i32 {sT[3]}, {sCH}, {HP}')
        A(f's_add_u32 {sT[3]}, {sT[3]}, {L_H}')
        A(f's_mul_i32 {sT[4]}, {sCH}, {64*UVP}')
        A(f's_add_u32 {sT[4]}, {sT[4]}, {L_UV}')
        A('v_mov_b32 v14, 0')
        A('v_mov_b32 v15, 0')
        A(f'v_lshl_add_u32 v16, {vLANE}, 3, {sT[3]}')
        A('ds_write_b64 v16, v[14:15]')
        A(f'v_bfe_u32 v16, {vLANE}, 3, 2')
        A(f'v_mul_u32_u24 v16, {KCP}, v16')
        A(f'v_and_b32 v17, 7, {vLANE}')
        A(f'v_lshl_add_u32 v16, v17, 2, v16')
        A(f'v_add_u32 v16, {sT[2]}, v16')
        A('ds_write_b32 v16, v14')
        vW = 'v18'
        vR = 'v19'
        vK = 'v20'
        A(f'v_lshl_add_u32 {vW}, {vLANE}, 3, {sT[4]}')
        A(f'v_and_b32 v16, 31, {vLANE}')
        A(f'v_mul_u32_u24 {vR}, {UVP}, v16')
        A(f'v_lshrrev_b32 v16, 5, {vLANE}')
        A(f'v_lshl_add_u32 {vR}, v16, 4, {vR}')
        A(f'v_add_u32 {vR}, {sT[4]}, {vR}')
        A(f'v_add_u32 {vK}, {sT[2]}, {vL16}')
        L2E = math.log2(math.e)
        LHI = struct.unpack('<f', struct.pack('<I', f2u(L2E) & 0xffffff00))[0]
        LLO = (L2E - LHI) * math.log(2)
        vm.wait('tag')
        self.stamp(1)
        self.tag_finish(vE)
        P = 32
        la = [v(P), v(P+1)]; ai = [v(P+2), v(P+3)]
        C0 = [P+4, P+6]
        A(f'v_lshlrev_b32 {LD}, 16, {LD}')
        A(f'v_lshlrev_b32 {la[0]}, 16, {LA}')
        A(f'v_and_b32 {la[1]}, 0xffff0000, {LA}')
        A(f'v_lshlrev_b32 {v(C0[0])}, 16, {CR}')
        A(f'v_and_b32 {v(C0[1])}, 0xffff0000, {CR}')
        A(f'v_lshlrev_b32 {v(C0[0]+1)}, 16, {CI}')
        A(f'v_and_b32 {v(C0[1]+1)}, 0xffff0000, {CI}')
        vMX = 'v21'
        A(f'v_max_f32 {vMX}, |{v(C0[0])}|, |{v(C0[1])}|')
        A(f'v_max3_f32 {vMX}, |{v(C0[0]+1)}|, |{v(C0[1]+1)}|, {vMX}')
        xs = [LD, la[0], la[1]]; ts = ['v22', 'v23', 'v24']; us = ['v25', 'v26', 'v27']
        for x, t in zip(xs, ts): A(f'v_mul_f32 {t}, {hx(f2u(LHI))}, {x}')
        A(f'v_max_f32_dpp {vMX}, {vMX}, {vMX} row_ror:8 row_mask:0xf bank_mask:0xf')
        for t in ts: A(f'v_exp_f32 {t}, {t}')
        A(f'v_max_f32_dpp {vMX}, {vMX}, {vMX} row_ror:4 row_mask:0xf bank_mask:0xf')
        for x, u in zip(xs, us): A(f'v_mul_f32 {u}, {hx(f2u(LLO))}, {x}')
        A(f'v_max_f32_dpp {vMX}, {vMX}, {vMX} row_ror:2 row_mask:0xf bank_mask:0xf')
        for t, u in zip(ts, us): A(f'v_fma_f32 {t}, {t}, {u}, {t}')
        A(f'v_max_f32_dpp {vMX}, {vMX}, {vMX} row_ror:1 row_mask:0xf bank_mask:0xf')
        for t in ts: self.rne_bf16_hi(t, t)
        A(f'v_mov_b32 v28, {vMX}')
        DT = ts[0]
        A(f'v_lshlrev_b32 {ai[0]}, 16, {AI}')
        A(f'v_and_b32 {ai[1]}, 0xffff0000, {AI}')
        A(f'v_permlane32_swap_b32 {vMX}, v28')
        for k in range(2):
            A(f'v_mul_f32 {la[k]}, {ts[1+k]}, {DT}')
            A(f'v_mul_f32 {ai[k]}, {ai[k]}, {DT}')
        A(f'v_max_f32 {vMX}, {vMX}, v28')
        A(f'v_mov_b32 v28, {vMX}')
        for k in range(2):
            A(f'v_mul_f32 {la[k]}, {hx(f2u(-L2E))}, {la[k]}')
            A(f'v_mul_f32 {ai[k]}, {hx(f2u(1/(2*math.pi)))}, {ai[k]}')
        A(f'v_permlane16_swap_b32 {vMX}, v28')
        A(f'v_max_f32 {vMX}, {vMX}, v28')
        A(f'v_frexp_exp_i32_f32 {vMX}, {vMX}')
        A(f'v_sub_u32 v28, 14, {vMX}')
        for k in range(2):
            A(f'v_ldexp_f32 {v(C0[k])}, {v(C0[k])}, v28')
            A(f'v_ldexp_f32 {v(C0[k]+1)}, -{v(C0[k]+1)}, v28')
        vSC = 'v29'
        A(f'v_subrev_u32 {vMX}, 27, {vMX}')
        A(f'v_ldexp_f32 {vSC}, {DT}, {vMX}')
        Z = {8: [40, 42], 1: [44, 46], 256: [48, 50]}
        for p in (8, 1, 256):
            for k in range(2):
                zr, zi = v(Z[p][k]), v(Z[p][k]+1)
                e, w = v(52+k), v(54+k)
                if p == 1:
                    A(f'v_exp_f32 {e}, {la[k]}')
                    A(f'v_fract_f32 {w}, {ai[k]}')
                else:
                    A(f'v_mul_f32 {e}, {hx(f2u(float(p)))}, {la[k]}')
                    A(f'v_mul_f32 {w}, {hx(f2u(float(p)))}, {ai[k]}')
                    A(f'v_exp_f32 {e}, {e}')
                    A(f'v_fract_f32 {w}, {w}')
                A(f'v_cos_f32 {zr}, {w}')
                A(f'v_sin_f32 {zi}, {w}')
            for k in range(2):
                A(f'v_mul_f32 {v(Z[p][k])}, {v(Z[p][k])}, {v(52+k)}')
                A(f'v_mul_f32 {v(Z[p][k]+1)}, {v(Z[p][k]+1)}, {v(52+k)}')
        def cmul(dst, src, z, conj, tmp):
            neg = 'neg_hi:[1,0,0]' if conj else 'neg_lo:[1,0,0]'
            return [f'v_pk_mul_f32 {v(tmp,2)}, {v(src,2)}, {v(z,2)} op_sel:[0,0] op_sel_hi:[1,0]',
                    f'v_pk_fma_f32 {v(dst,2)}, {v(src,2)}, {v(z,2)}, {v(tmp,2)} op_sel:[1,1,0] op_sel_hi:[0,1,1] {neg}']
        pk = [0]
        def emit_row(src, rows):
            o = 56 + 2 * (pk[0] % 4); pk[0] += 1
            ins = [f'v_cvt_pk_f16_f32 {v(o+k)}, {v(src[k])}, {v(src[k]+1)}' for k in range(2)]
            ins += [f'ds_write_b64 {vW}, {v(o,2)} offset:{r*UVP}' for r in rows]
            return ins
        def drow(h, rho): return 8*(rho >> 2) + 4*h + (rho & 3)
        TU = {j: [64 + 4*j, 66 + 4*j] for j in range(9)}
        TU[0] = C0
        usteps = []
        usteps.append(([], TU[0], [drow(0, 0)]))
        for j in range(1, 9):
            usteps.append(([(TU[j][k], TU[j-1][k], Z[1][k]) for k in range(2)], TU[j], [drow(0, j)]))
        r1 = {0: [0, 1], 2: [2], 4: [3, 4, 5], 6: [6], 8: [7, 8]}
        def adv(j, rows): usteps.append(([(TU[j][k], TU[j][k], Z[256][k]) for k in range(2)], TU[j], rows))
        for j in (0, 2, 4, 6, 8): adv(j, [drow(1, x) for x in r1[j]])
        for h in (0, 1):
            for n, j in enumerate((0, 4, 8)): adv(j, [drow(h, 9+n)])
        for m in range(4):
            for n, j in enumerate((0, 8)): adv(j, [drow(m & 1, 12 + 2*(m >> 1) + n)])
        VC = [100, 102]
        A(f'v_mov_b32 {v(VC[0])}, {hx(f2u(16384.0))}')
        A(f'v_mov_b32 {v(VC[0]+1)}, 0')
        A(f'v_mov_b32 {v(VC[1])}, {hx(f2u(16384.0))}')
        A(f'v_mov_b32 {v(VC[1]+1)}, 0')
        vsteps = [([], VC, [32])]
        for b in range(1, 32):
            vsteps.append(([(VC[k], VC[k], Z[8][k]) for k in range(2)], VC, [32 + b]))
        for n in range(32):
            lists = []
            for steps, conj, tb in ((vsteps, False, 104), (usteps, True, 108)):
                if n < len(steps):
                    muls, src, rows = steps[n]
                    cm = [cmul(d_, s_, z_, conj, tb + 2*k) for k, (d_, s_, z_) in enumerate(muls)]
                    lists.append(([c[0] for c in cm], [c[1] for c in cm], emit_row(src, rows)))
            for part in range(3):
                for l_ in lists:
                    for ins in l_[part]: A(ins)
        AF, BFr, D = 128, 192, 112
        lg.waitall()
        for st in range(16):
            A(f'ds_read_b128 {v(AF+4*st,4)}, {vR} offset:{st*32}'); lg.issue(st)
            A(f'ds_read_b128 {v(BFr+4*st,4)}, {vR} offset:{32*UVP + st*32}'); lg.issue(st)
            if st >= 3:
                m = st - 3
                lg.wait(m)
                A(f'v_mfma_f32_32x32x16_f16 {v(D,16)}, {v(AF+4*m,4)}, {v(BFr+4*m,4)}, {"0" if m == 0 else v(D,16)}')
        for m in range(13, 16):
            lg.wait(m)
            A(f'v_mfma_f32_32x32x16_f16 {v(D,16)}, {v(AF+4*m,4)}, {v(BFr+4*m,4)}, {v(D,16)}')
        for k in range(4):
            A(f'v_add_u32 {v(32+k)}, {2*KCP + 28 + 1024*k}, {vK}')
            A(f'v_add_u32 {v(36+k)}, {3*KCP + 28 + 1024*k}, {vK}')
        A(f'v_lshlrev_b32 {DS_}, 16, {DS_}')
        A(f'v_cmp_eq_u32 vcc, 0, {vLANE}')
        A(f'v_cndmask_b32 {DS_}, 0, {DS_}, vcc')
        A(f'v_and_b32 v16, 1, {vLANE}')
        A(f'v_cmp_eq_u32 vcc, 0, v16')
        A(f'v_fma_f32 {v(D)}, {v(D)}, {vSC}, {DS_}')
        for r in range(1, 16):
            A(f'v_mul_f32 {v(D+r)}, {v(D+r)}, {vSC}')
        A(f'v_cndmask_b32 v40, {v(D+13)}, {v(D+12)}, vcc')
        A(f'v_cndmask_b32 v41, {v(D+15)}, {v(D+14)}, vcc')
        a_, b_, c_ = D+9, D+10, D+11
        elems = [[D+j for j in range(9)],
                 [a_, a_, a_, b_, b_, b_, c_, c_, c_],
                 [D+12]*4 + [40] + [D+13]*4,
                 [D+14]*4 + [41] + [D+15]*4]
        for k in range(4):
            E = 64 + 8*k; O = E + 4
            el = elems[k]
            for j in range(4): A(f'v_cvt_pk_bf16_f32 {v(E+j)}, {v(el[2*j])}, {v(el[2*j+1])}')
            A(f'ds_write_b128 {vK}, {v(E,4)} offset:{32 + 1024*k}')
            A(f'ds_write2_b32 {v(32+k)}, {v(E)}, {v(E+1)} offset0:0 offset1:1')
            A(f'ds_write2_b32 {v(32+k)}, {v(E+2)}, {v(E+3)} offset0:2 offset1:3')
            for j in range(4): A(f'v_cvt_pk_bf16_f32 {v(O+j)}, {v(el[2*j+1])}, {v(el[2*j+2])}')
            A(f'ds_write_b128 {vK}, {v(O,4)} offset:{KCP + 32 + 1024*k}')
            A(f'ds_write2_b32 {v(36+k)}, {v(O)}, {v(O+1)} offset0:0 offset1:1')
            A(f'ds_write2_b32 {v(36+k)}, {v(O+2)}, {v(O+3)} offset0:2 offset1:3')
        A(f'v_lshlrev_b32 v16, 16, v64')
        self.setexec(1)
        A(f'ds_write_b32 {vK}, v16 offset:{KCP + 28}')
        A(f'ds_write_b32 {vK}, v16 offset:{3*KCP + 24}')
        self.execall()
        self.stamp(2)
        TB = 128
        GBr = 192
        MP = 24
        vWF = 'v26'
        A(f'v_subrev_u32 v6, 128, {vTID}')
        A(f'v_lshlrev_b32 v8, 4, v6')
        A(f'v_lshlrev_b32 v9, 3, v6')
        self.modfetch_addr('v7')
        A(f'v_lshlrev_b32 v10, 2, {vL}')
        A(f's_and_b32 {sT[0]}, {sNT}, 3')
        A(f's_lshl_b32 {sT[0]}, {sT[0]}, 10')
        A(f's_add_u32 {sT[0]}, {sT[0]}, {MODP + 2560*8}')
        A(f's_lshl_b32 {sT[1]}, {sNT}, 7')
        A(f's_add_u32 {sT[1]}, {sT[1]}, {WFLAG}')
        self.spin_begin('L_sp_tb')
        A(f'buffer_load_dwordx2 {v(MP,2)}, v7, {WS}, {sT[6]} offen sc1')
        A(f'buffer_load_dword {vWF}, v10, {WS}, {sT[1]} offen sc1')
        for kq in range(4):
            for vec in range(2):
                A(f's_mov_b32 {sT[2]}, {MODP + kq*24576 + (2048 - 512*vec)*8}')
                for y in range(2):
                    A(f'buffer_load_dwordx4 {v(TB+16*kq+8*vec+4*y,4)}, v8, {WS}, {sT[2]} offen offset:{y*2048} sc1')
            A(f's_add_u32 {sT[2]}, {sT[0]}, {kq*24576}')
            A(f'buffer_load_dwordx2 {v(GBr+2*kq,2)}, v9, {WS}, {sT[2]} offen sc1')
        A('s_waitcnt vmcnt(0)')
        tags = [MP+1, 26] + [TB + 2*n + 1 for n in range(32)] + [GBr + 2*n + 1 for n in range(4)]
        for t in tags: A(f'v_xor_b32 {v(t)}, {sTAG}, {v(t)}')
        A(f'v_or_b32 v11, {v(tags[0])}, {v(tags[1])}')
        for n in range(2, len(tags), 2):
            A(f'v_or3_b32 v11, {v(tags[n])}, {v(tags[n+1])}, v11')
        A('v_cmp_ne_u32 vcc, 0, v11')
        A('s_nop 4')
        self.spin_end('L_sp_tb')
        self.stamp(3)
        self.modfetch_finish(MP)
        for n in range(8):
            r = TB + 2*n
            A(f'v_add_f32 {v(r)}, {v(r)}, {v(r+16)}')
            A(f'v_add_f32 {v(r+32)}, {v(r+32)}, {v(r+48)}')
            A(f'v_add_f32 {v(r)}, {v(r)}, {v(r+32)}')
        A(f'v_add_f32 {v(GBr)}, {v(GBr)}, {v(GBr+2)}')
        A(f'v_add_f32 {v(GBr+4)}, {v(GBr+4)}, {v(GBr+6)}')
        A(f'v_add_f32 {v(GBr)}, {v(GBr)}, {v(GBr+4)}')
        self.rne_bf16_hi(v(GBr), v(GBr))
        A(f'v_lshlrev_b32 v11, 2, v6')
        A(f'v_add_u32 v11, {L_GB}, v11')
        A(f'ds_write_b32 v11, {v(GBr)}')
        A(f'v_lshrrev_b32 v11, 4, v6')
        A(f'v_lshlrev_b32 v11, 6, v11')
        A(f'v_bfe_u32 v12, v6, 1, 2')
        A(f'v_lshl_add_u32 v11, v12, 4, v11')
        A(f'v_and_b32 v12, 8, v6')
        A(f'v_add_u32 v11, v11, v12')
        A(f'v_and_b32 v12, 1, v6')
        A(f'v_lshl_add_u32 v11, v12, 2, v11')
        A(f'v_lshlrev_b32 v12, 1, v11')
        A(f'v_add_u32 v11, {L_SB}, v11')
        A(f'v_add_u32 v12, {L_SC}, v12')
        for y in range(2):
            cb = TB + 4*y; sb = TB + 8 + 4*y
            A(f'v_cvt_pk_bf16_f32 {v(sb)}, {v(sb)}, {v(sb+2)}')
            A(f'ds_write_b32 v11, {v(sb)} offset:{y*512}')
            for k in (0, 2):
                self.rne_bf16_hi(v(cb+k), v(cb+k))
                A(f'v_add_f32 {v(cb+k)}, 1.0, {v(cb+k)}')
            A(f'v_cvt_pk_bf16_f32 {v(cb+2)}, {v(cb)}, {v(cb+2)}')
            A(f'v_and_b32 {v(cb)}, 0xffff, {v(cb+2)}')
            A(f'v_and_b32 {v(cb+1)}, 0xffff0000, {v(cb+2)}')
            A(f'ds_write_b64 v12, {v(cb,2)} offset:{y*1024}')
        self.stamp(4)

    def wraw(self, f):
        return 160 + 4*f if f < 24 else 64 + 4*(f - 24)
    def wfin(self, f):
        return v(160 + 4*f, 4) if f < 24 else a(4*(f - 24), 4)
    def wload(self, f):
        ks, j = divmod(f, 3)
        A = self.A
        if j == 0:
            A(f's_add_u32 {sT[5]}, {sT[4]}, {ks*11*1024}')
        va = 'v13' if j < 2 else 'v14'
        A(f'buffer_load_dwordx4 {v(self.wraw(f),4)}, {va}, {WS}, {sT[5]} offen offset:{j*1024}')
        self.vm.issue(('w', f))

    def conv(self):
        A, vm, lg = self.A, self.vm, self.lg
        A.label('L_join1')
        vm.reset(); lg.reset()
        vG, vB = 'v6', 'v7'
        A(f's_lshr_b32 {sT[0]}, {sWAVE}, 1')
        A(f's_and_b32 {sT[1]}, {sWAVE}, 1')
        A(f's_mul_i32 {sT[2]}, {sT[0]}, {4*KCP}')
        A(f's_lshl_b32 {sT[3]}, {sT[1]}, 8')
        A(f's_add_u32 {sT[2]}, {sT[2]}, {sT[3]}')
        A(f's_add_u32 {sT[2]}, {sT[2]}, {L_KC + 48}')
        A(f'v_add_u32 v8, 1, {vL}')
        A(f'v_and_b32 v9, 3, v8')
        A(f'v_mul_u32_u24 {vG}, {KCP}, v9')
        A(f'v_and_b32 v8, 28, v8')
        A(f'v_lshl_add_u32 {vG}, v8, 1, {vG}')
        A(f'v_lshlrev_b32 v8, 4, {vQ}')
        A(f'v_sub_u32 {vG}, {vG}, v8')
        A(f'v_add_u32 {vG}, {sT[2]}, {vG}')
        A(f's_mul_i32 {sT[2]}, {sT[0]}, {HP}')
        A(f's_sub_u32 {sT[2]}, {sT[2]}, {sT[3]}')
        A(f's_add_u32 {sT[2]}, {sT[2]}, {L_H + 480 - 192}')
        A(f'v_lshl_add_u32 {vB}, {vL}, 5, v8')
        A(f'v_add_u32 {vB}, {sT[2]}, {vB}')
        A(f'v_bfe_u32 v8, {vL}, 1, 2')
        A(f'v_xor_b32 v8, v8, {vQ}')
        A(f'v_lshlrev_b32 v8, 4, v8')
        A(f'v_lshl_add_u32 v8, {vL}, 6, v8')
        A(f's_lshl_b32 {sT[2]}, {sWAVE}, 13')
        A(f's_add_u32 {sT[2]}, {sT[2]}, {L_YP}')
        A(f'v_add_u32 v8, {sT[2]}, v8')
        A(f'v_and_b32 v9, 1, {vTID}')
        A(f'v_lshlrev_b32 v9, 1, v9')
        A(f'v_bfe_u32 v10, {vTID}, 2, 2')
        A(f'v_xor_b32 v9, v9, v10')
        A(f'v_lshrrev_b32 v10, 1, {vTID}')
        A(f'v_lshlrev_b32 v10, 6, v10')
        A(f'v_lshl_add_u32 v9, v9, 4, v10')
        A(f'v_add_u32 v9, {L_YP}, v9')
        A(f'v_xor_b32 v10, 16, v9')
        A(f'v_lshlrev_b32 v12, 4, {vTID}')
        A(f'v_add_u32 v11, {L_XL}, v12')
        A(f'v_lshrrev_b32 v13, 1, {vL}')
        A(f'v_and_b32 v14, 3, v13')
        A(f'v_and_b32 v13, 8, {vL}')
        A(f'v_add_u32 v13, v13, v14')
        A(f'v_and_b32 v14, 1, {vL}')
        A(f'v_lshl_add_u32 v13, v14, 2, v13')
        A(f'v_lshl_add_u32 v13, {vQ}, 4, v13')
        A(f'v_lshlrev_b32 v13, 4, v13')
        A(f's_cmp_eq_u32 {sWAVE}, 3')
        A(f's_cselect_b32 {sT[2]}, {OOB}, 0')
        A(f'v_add_u32 v14, {sT[2]}, v13')
        A(f's_mul_i32 {sT[4]}, {sNT}, {16*11*1024}')
        A(f's_mul_i32 {sT[2]}, {sWAVE}, 3072')
        A(f's_add_u32 {sT[4]}, {sT[4]}, {sT[2]}')
        A(f's_add_u32 {sT[4]}, {sT[4]}, {WP}')
        A('s_waitcnt lgkmcnt(0)')
        A('s_barrier')
        self.stamp(5)
        if self.stop == 'h': return self.dump_lds()
        ACC = 128
        def Gr(buf, s1): return 64*buf + 4*s1
        def Br(buf, u): return 64*buf + 32 + 4*u
        def reads(p):
            out = []
            for k in range(8):
                o = 64*(8*k + p)
                out.append([f'ds_read_b64 {a(Gr(p&1,k),2)}, {vG} offset:{o}', ('G', p, k)])
                out.append([f'ds_read_b64 {a(Gr(p&1,k)+2,2)}, {vG} offset:{o+8}', ('G', p, k)])
                out.append([f'ds_read_b128 {a(Br(p&1,k),4)}, {vB} offset:{512*k + 64*(3-p)}', ('B', p, k)])
            return out
        pairs = sorted([(s1, u) for s1 in range(8) for u in range(8) if s1 + u <= 7], key=lambda t: (max(t), t[0] + t[1]))
        touched = set()
        wnext = 0
        pend = reads(0)
        def issue_read():
            ins, tag = pend.pop(0)
            A(ins); lg.issue(tag)
        for _ in range(12): issue_read()
        for p in range(4):
            for n, (s1, u) in enumerate(pairs):
                lg.wait(('G', p, s1)); lg.wait(('B', p, u))
                if n == 0 and p < 3: pend += reads(p+1)
                c = s1 + u
                A(f'v_mfma_f32_16x16x32_bf16 {a(ACC+4*c,4)}, {a(Gr(p&1,s1),4)}, {a(Br(p&1,u),4)}, {a(ACC+4*c,4) if c in touched else "0"}')
                touched.add(c)
                if pend: issue_read()
                if pend and p == 0 and n < 8: issue_read()
                if n % 6 == 3 and wnext < 24:
                    self.wload(wnext); wnext += 1
            assert not pend
        self.stamp(6)
        for c in range(8):
            A(f'ds_write_b128 v8, {a(ACC+4*c,4)} offset:{1024*c}')
        A('s_waitcnt lgkmcnt(0)')
        A('s_barrier')
        Y = 64
        for ch in range(2):
            yb = Y + 24*ch
            for pw in range(2):
                A(f'ds_read_b128 {v(yb+8*pw,4)}, v9 offset:{(2*ch+pw)*8192}'); lg.issue(ch)
                A(f'ds_read_b128 {v(yb+8*pw+4,4)}, v10 offset:{(2*ch+pw)*8192}'); lg.issue(ch)
            A(f'ds_read_b128 {v(yb+16,4)}, v11 offset:{ch*4096}'); lg.issue(ch)
        A(f's_lshl_b32 {sT[0]}, {sD0}, 12')
        A(f's_add_u32 {sT[0]}, {sT[0]}, {X1T}')
        A(f's_add_u32 {sT[1]}, {sT[0]}, {8*4096}')
        for ch in range(2):
            yb = Y + 24*ch; O = 16 + 4*ch
            lg.wait(ch)
            for r in range(0, 8, 2):
                A(f'v_pk_add_f32 {v(yb+r,2)}, {v(yb+r,2)}, {v(yb+8+r,2)}')
            for e in range(4):
                A(f'v_lshlrev_b32 {v(yb+8+7-2*e)}, 16, {v(yb+16+e)}')
                A(f'v_and_b32 {v(yb+8+6-2*e)}, 0xffff0000, {v(yb+16+e)}')
            for r in range(8):
                A(f'v_fma_f32 {v(yb+r)}, {v(yb+r)}, {sMOD[4+ch]}, {v(yb+8+r)}')
            for e in range(4):
                A(f'v_cvt_pk_bf16_f32 {v(O+e)}, {v(yb+2*e)}, {v(yb+2*e+1)}')
            A(f'buffer_store_dwordx4 {v(O,4)}, v12, {WS}, {sT[ch]} offen sc1'); vm.issue('x1')
        self.stamp(7)
        while wnext < 48:
            self.wload(wnext); wnext += 1

    def scale_sync2(self):
        A, vm, lg = self.A, self.vm, self.lg
        S1, S2 = 16, 28
        SCR = [40, 48]
        SBR = [a(96, 4), a(100, 4)]
        ONE = a(104, 4)
        TMP = 56
        A(f'v_lshlrev_b32 v6, 5, {vQ}')
        A(f'v_add_u32 v6, {L_SC}, v6')
        A(f'v_lshlrev_b32 v7, 4, {vQ}')
        A(f'v_add_u32 v7, {L_SB}, v7')
        A('v_mov_b32 v8, 0x3f803f80')
        for k in range(4): A(f'v_accvgpr_write_b32 a{104+k}, v8')
        A(f's_cmp_eq_u32 {sWAVE}, 3')
        A(f's_cselect_b32 s72, 0xefffefff, -1')
        A(f's_mov_b32 s73, s72')
        def tabread(ks):
            b = SCR[ks & 1]
            A(f'ds_read_b128 {v(b,4)}, v6 offset:{ks*128}'); lg.issue(('t', ks))
            A(f'ds_read_b128 {v(b+4,4)}, v6 offset:{ks*128+16}'); lg.issue(('t', ks))
            A(f'ds_read_b128 {SBR[ks&1]}, v7 offset:{ks*64}'); lg.issue(('t', ks))
        def scale(ks):
            if ks + 1 < 16: tabread(ks + 1)
            lg.wait(('t', ks))
            b = SCR[ks & 1]
            for j in range(3):
                f = 3*ks + j
                r = self.wraw(f)
                vm.wait(('w', f))
                A(f'v_mfma_f32_16x16x32_bf16 {v(S2+4*j,4)}, {v(r,4)}, {SBR[ks&1]}, {"0" if ks == 0 else v(S2+4*j,4)}')
                for k in range(4):
                    A(f'v_dot2_f32_bf16 {v(TMP+2*k)}, {v(r+k)}, {v(b+2*k)}, 0')
                    A(f'v_dot2_f32_bf16 {v(TMP+2*k+1)}, {v(r+k)}, {v(b+2*k+1)}, 0')
                if j == 1: A(f's_mov_b64 exec, {sM1}')
                for k in range(4):
                    A(f'v_cvt_pk_bf16_f32 {v(r+k)}, {v(TMP+2*k)}, {v(TMP+2*k+1)}')
                if j == 1: self.execall()
                if f >= 24:
                    for k in range(4):
                        A(f'v_accvgpr_write_b32 a{4*(f-24)+k}, {v(r+k)}')
                A(f'v_mfma_f32_16x16x32_bf16 {v(S1+4*j,4)}, {v(r,4)}, {ONE}, {"0" if ks == 0 else v(S1+4*j,4)}')
        tabread(0)
        for par in range(2):
            d_ = f'v{9+par}'
            A(f'v_add_u32 v11, {4*par}, {vQ}')
            A(f'v_lshrrev_b32 {d_}, 1, {vL}')
            A(f'v_xor_b32 {d_}, {d_}, v11')
            A(f'v_lshlrev_b32 {d_}, 5, {d_}')
            A(f'v_lshl_add_u32 {d_}, v11, 12, {d_}')
            A(f'v_and_b32 v11, 1, {vL}')
            A(f'v_lshl_add_u32 {d_}, v11, 4, {d_}')
        vm.wait('x1')
        A('s_barrier')
        A(f's_cmp_lg_u32 {sWAVE}, 0')
        A('s_cbranch_scc1 L_s2_noarr')
        A(f's_and_b32 {sT[0]}, s2, 15')
        A(f's_lshl_b32 {sT[0]}, {sT[0]}, 8')
        A(f's_add_u32 {sT[0]}, {sT[0]}, {CTR}')
        A(f'v_lshlrev_b32 v11, 12, {vLANE}')
        A('v_mov_b32 v12, 1')
        self.setexec(0xf)
        A(f'buffer_atomic_add v12, v11, {WS}, {sT[0]} offen sc1')
        self.execall()
        A.label('L_s2_noarr')
        self.stamp(8)
        for ks in range(0, 11): scale(ks)
        A(f's_cmp_lg_u32 {sWAVE}, 0')
        A('s_cbranch_scc1 L_s2_nopoll')
        A(f's_and_b32 {sT[0]}, s2, 3')
        A(f's_lshl_b32 {sT[0]}, {sT[0]}, 12')
        A(f's_add_u32 {sT[0]}, {sT[0]}, {CTR}')
        A(f'v_lshlrev_b32 v11, 8, {vL}')
        self.spin_begin('L_sp_s2')
        A(f'buffer_load_dword v12, v11, {WS}, {sT[0]} offen sc1')
        A('s_waitcnt vmcnt(0)')
        A('v_cmp_ne_u32 vcc, 16, v12')
        A('s_nop 4')
        self.spin_end('L_sp_s2')
        A('s_cmp_lg_u32 s2, 0')
        A('s_cbranch_scc1 L_s2_nopoll')
        A(f'v_mov_b32 v12, {sTAG}')
        self.setexec(1)
        A(f'buffer_store_dword v12, off, {WS}, 0 offset:{EPOCH} sc1')
        self.execall()
        A('s_waitcnt vmcnt(0)')
        A.label('L_s2_nopoll')
        A('s_barrier')
        self.stamp(9)
        if self.stop == 'x1': return self.endk()
        A(f's_lshl_b32 {sT[0]}, {sWAVE}, 15')
        A(f's_lshl_b32 {sT[1]}, {sMT}, 8')
        A(f's_add_u32 {sT[0]}, {sT[0]}, {sT[1]}')
        A(f's_add_u32 {sT[0]}, {sT[0]}, {X1T}')
        A(f's_lshl_b32 {sT[1]}, {sWAVE}, 11')
        A(f's_mov_b32 m0, {sT[1]}')
        for ks in range(16):
            for par in range(2):
                A(f'buffer_load_dwordx4 v{9+par}, {WS}, {sT[0]} offen lds'); vm.issue(('x', ks))
                A(f's_add_u32 m0, m0, {1024 if par == 0 else 7168}')
            A(f's_add_u32 {sT[0]}, {sT[0]}, {32*4096}')
        for ks in range(11, 16): scale(ks)
        for j in range(3):
            for r in (0, 2):
                A(f'v_mul_f32 {v(S1+4*j+r)}, {hx(f2u(-math.log2(math.e)))}, {v(S1+4*j+r)}')
                A(f'v_mul_f32 {v(S2+4*j+r)}, {hx(f2u(-math.log2(math.e)))}, {v(S2+4*j+r)}')

    def wdreg(self, n):
        if n < 32: return a(128 + 4*n, 4)
        if n < 56: return v(160 + 4*(n - 32), 4)
        if n < 80: return a(4*(n - 56), 4)
        return v(128 + 4*(n - 80), 4)
    def wdload(self, n):
        A = self.A
        kp, T = divmod(n, 2)
        if T == 0:
            A(f's_add_u32 {sT[5]}, {sT[4]}, {kp*32768}')
        A(f'buffer_load_dwordx4 {self.wdreg(n)}, {vL16}, {WS}, {sT[5]} offen offset:{T*1024}')
        self.vm.issue(('wd', n))

    def gemm1(self):
        A, vm, lg = self.A, self.vm, self.lg
        TA = 40
        A(f'v_lshrrev_b32 v6, 2, {vLANE}')
        A(f'v_and_b32 v7, 7, v6')
        A(f'v_and_b32 v8, 3, {vLANE}')
        A(f'v_lshlrev_b32 v8, 3, v8')
        A(f'v_lshl_add_u32 v8, v6, 8, v8')
        for lt in range(8):
            A(f'v_xor_b32 {v(TA+lt)}, {lt}, v7')
            A(f'v_lshl_add_u32 {v(TA+lt)}, {v(TA+lt)}, 5, v8')
        A(f's_lshl_b32 {sT[4]}, {sCOL}, 11')
        A(f's_add_u32 {sT[4]}, {sT[4]}, {WDP}')
        A(f's_cmp_eq_u32 {sWAVE}, 3')
        A('s_cbranch_scc1 L_g1_w3')
        saved = (list(vm.q), list(lg.q))
        self.gemm1_loop(False)
        A('s_branch L_g1_join')
        A.label('L_g1_w3')
        vm.q, lg.q = list(saved[0]), list(saved[1])
        self.gemm1_loop(True)
        ACC = 64
        A(f'v_lshlrev_b32 v6, 3, {vL}')
        A(f'v_add_u32 v6, {L_S2}, v6')
        self.setexec(0, 0xffff0000)
        for lt in range(8):
            A(f'ds_write_b32 v6, {v(ACC + 12*lt + 4)} offset:{lt*128}')
        for r in range(4):
            m = 1 << r
            self.setexec(m | (m << 20), (m << 8) | (m << 28))
            for lt in range(8):
                A(f'ds_write_b32 v6, {v(ACC + 12*lt + 8 + r)} offset:{lt*128 + 4}')
        self.execall()
        A(f'v_lshlrev_b32 v6, 3, {vLANE}')
        A(f'v_add_u32 v6, {L_S2}, v6')
        A(f'v_add_u32 v7, {L_S2 + 1024}, {vL16}')
        A('s_waitcnt lgkmcnt(0)')
        for y in range(2):
            A(f'ds_read_b64 {v(48+2*y,2)}, v6 offset:{y*512}')
        A('s_waitcnt lgkmcnt(0)')
        for y in range(2):
            su, sq = v(48+2*y), v(49+2*y)
            o = 52 + 4*y
            A(f'v_mul_f32 {su}, {hx(f2u(1/512))}, {su}')
            A(f'v_mul_f32 {sq}, {hx(f2u(1/512))}, {sq}')
            A(f'v_fma_f32 {sq}, -{su}, {su}, {sq}')
            A(f'v_max_f32 {sq}, 0, {sq}')
            A(f'v_add_f32 {sq}, {hx(f2u(1e-5))}, {sq}')
            A(f'v_rsq_f32 {v(o+1)}, {sq}')
            A(f'v_mul_f32 {v(o)}, {hx(f2u(-math.log2(math.e)))}, {v(o+1)}')
            A(f'v_mul_f32 {v(o+2)}, {su}, {v(o+1)}')
            A(f'v_mov_b32 {v(o+3)}, 0')
            A(f'ds_write_b128 v7, {v(o,4)} offset:{y*1024}')
        A('s_waitcnt lgkmcnt(0)')
        A.label('L_g1_join')
        lg.reset()
        A('s_barrier')
        self.stamp(10)

    def gemm1_loop(self, w3):
        A, vm, lg = self.A, self.vm, self.lg
        TA, ACC, RING = 40, 64, 96
        PF = 5
        bar_before = {0: 0, 1: 1, 2: 3, 4: 7, 8: 15}
        def fetch(n):
            ks, lt = divmod(n, 8)
            if lt == 0 and ks in bar_before:
                vm.wait(('x', bar_before[ks]))
                A('s_barrier')
            if ks == 8:
                A(f'v_add_u32 {v(TA+lt)}, 0x10000, {v(TA+lt)}')
            r = RING + 4*(n % 8)
            for hf in range(2):
                A(f'ds_read_b64_tr_b16 {a(r+2*hf,2)}, {v(TA+lt)} offset:{(ks%8)*8192 + hf*4096}'); lg.issue(n)
        for n in range(PF): fetch(n)
        wd = 0
        for n in range(128):
            ks, lt = divmod(n, 8)
            lg.wait(n)
            b = a(RING + 4*(n % 8), 4)
            for j in range(3):
                d_ = v(ACC + 12*lt + 4*j, 4)
                aop = b if (w3 and j == 2) else self.wfin(3*ks + j)
                A(f'v_mfma_f32_16x16x32_bf16 {d_}, {aop}, {b}, {"0" if ks == 0 else d_}')
                if j == 0 and n + PF < 128: fetch(n + PF)
            avail = min(80, 32 + 3*ks)
            want = max(0, (n - 32) * 78 // 96)
            if wd < min(avail, want):
                self.wdload(wd); wd += 1
        self.wd_next = wd

    def epi1(self):
        A, vm, lg = self.A, self.vm, self.lg
        S1, S2, ACC = 16, 28, 64
        RM = [40, 44]
        X1R = 48
        T = 56
        while self.wd_next < 80:
            self.wdload(self.wd_next); self.wd_next += 1
        A(f'v_lshlrev_b32 v6, 4, {vL}')
        A(f'v_add_u32 v7, {L_S2 + 1024}, v6')
        A(f'ds_read_b128 {v(RM[0],4)}, v7'); lg.issue(('rm', 0))
        A(f'v_lshrrev_b32 v8, 2, {vL}')
        A(f'v_lshl_add_u32 v9, {vQ}, 3, v8')
        A(f'v_lshlrev_b32 v9, 8, v9')
        A(f'v_and_b32 v10, 3, {vLANE}')
        A(f'v_lshl_add_u32 v9, v10, 3, v9')
        A(f's_lshl_b32 {sT[0]}, {sCOL}, 13')
        A(f'v_add_u32 v9, {sT[0]}, v9')
        A(f's_lshl_b32 {sT[0]}, {sRQ}, 1')
        for lt in range(2):
            for T_ in range(2):
                A(f's_xor_b32 {sT[1]}, {sT[0]}, {lt + 4*T_}')
                A(f'v_xor_b32 v10, {sT[1]}, v8')
                A(f'v_lshl_add_u32 v10, v10, 5, v9')
                A(f'ds_read_b64_tr_b16 {v(X1R+4*lt+2*T_,2)}, v10 offset:{T_*1024}'); lg.issue('x1r')
        A(f'v_mul_u32_u24 v8, 45056, {vQ}')
        A(f'v_add_u32 v8, v8, v6')
        A(f's_cmp_eq_u32 {sWAVE}, 3')
        A(f's_cselect_b32 {sT[0]}, {OOB}, 0')
        A(f'v_add_u32 v9, {sT[0]}, v8')
        A(f's_mul_i32 {sT[0]}, {sMT}, {8*45056}')
        A(f's_mul_i32 {sT[1]}, {sNT}, {11*256}')
        A(f's_add_u32 {sT[0]}, {sT[0]}, {sT[1]}')
        A(f's_mul_i32 {sT[1]}, {sWAVE}, 768')
        A(f's_add_u32 {sT[0]}, {sT[0]}, {sT[1]}')
        A(f's_add_u32 {sT[0]}, {sT[0]}, {HH}')
        A(f's_add_u32 {sT[1]}, {sT[0]}, {4*45056}')
        for lt in range(8):
            if lt + 1 < 8:
                A(f'ds_read_b128 {v(RM[(lt+1)&1],4)}, v7 offset:{(lt+1)*256}'); lg.issue(('rm', lt+1))
            lg.wait(('rm', lt))
            rm = RM[lt & 1]
            for j in range(3):
                ac = ACC + 12*lt + 4*j
                for h in range(2):
                    A(f'v_pk_fma_f32 {v(T+2*h,2)}, {v(rm+2,2)}, {v(S1+4*j+2*h,2)}, {v(S2+4*j+2*h,2)} op_sel:[0,0,0] op_sel_hi:[0,1,1] neg_lo:[1,0,0] neg_hi:[1,0,0]')
                for h in range(2):
                    A(f'v_pk_fma_f32 {v(T+2*h,2)}, {v(rm,2)}, {v(ac+2*h,2)}, {v(T+2*h,2)}')
                for h in range(2): A(f'v_exp_f32 {v(T+2*h)}, {v(T+2*h)}')
                for h in range(2): A(f'v_add_f32 {v(T+2*h)}, 1.0, {v(T+2*h)}')
                for h in range(2): A(f'v_rcp_f32 {v(T+2*h)}, {v(T+2*h)}')
                for h in range(2): A(f'v_mul_f32 {v(T+2*h)}, {v(T+2*h)}, {v(T+2*h+1)}')
                P = ACC + 12*(lt & 4) + 4*j
                A(f'v_cvt_pk_bf16_f32 {v(P + (lt & 3))}, {v(T)}, {v(T+2)}')
            if lt & 3 == 3:
                for j in range(3):
                    P = ACC + 12*(lt & 4) + 4*j
                    A(f'v_permlane32_swap_b32 {v(P)}, {v(P+2)}')
                    A(f'v_permlane32_swap_b32 {v(P+1)}, {v(P+3)}')
                for j in range(3):
                    P = ACC + 12*(lt & 4) + 4*j
                    A(f'v_permlane16_swap_b32 {v(P)}, {v(P+1)}')
                    A(f'v_permlane16_swap_b32 {v(P+2)}, {v(P+3)}')
                for j in range(3):
                    P = ACC + 12*(lt & 4) + 4*j
                    A(f'buffer_store_dwordx4 {v(P,4)}, {"v9" if j == 2 else "v8"}, {WS}, {sT[lt>>2]} offen offset:{j*256} sc1'); vm.issue('hh')
        while self.wd_next < 88:
            self.wdload(self.wd_next); self.wd_next += 1
        self.stamp(11)
        A(f'v_lshlrev_b32 v6, 5, {vQ}')
        A(f's_lshl_b32 {sT[0]}, {sWAVE}, 7')
        A(f's_add_u32 {sT[0]}, {sT[0]}, {L_GB}')
        A(f'v_add_u32 v6, {sT[0]}, v6')
        A('ds_read_b128 v[16:19], v6')
        A('ds_read_b128 v[20:23], v6 offset:16')
        lg.waitall()
        vm.wait('hh')
        A('s_barrier')
        A(f's_cmp_lg_u32 {sWAVE}, 0')
        A('s_cbranch_scc1 L_s3_skip')
        A(f's_lshl_b32 {sT[0]}, {sMT}, 8')
        A(f's_add_u32 {sT[0]}, {sT[0]}, {CTR + 64*256}')
        A('v_mov_b32 v12, 1')
        self.setexec(1)
        A(f'buffer_atomic_add v12, off, {WS}, {sT[0]} sc1')
        self.spin_begin('L_sp_s3')
        A(f'buffer_load_dword v12, off, {WS}, {sT[0]} sc1')
        A('s_waitcnt vmcnt(0)')
        A('v_cmp_ne_u32 vcc, 16, v12')
        A('s_nop 4')
        self.spin_end('L_sp_s3')
        self.execall()
        A.label('L_s3_skip')
        A('s_barrier')

    def gemm2(self):
        A, vm, lg = self.A, self.vm, self.lg
        if self.stop == 'hh': return self.endk()
        RING, ACC, X1R, GB = 96, 64, 48, 16
        A(f's_and_b32 {sT[1]}, {sWAVE}, 1')
        A(f's_mul_i32 {sT[1]}, {sT[1]}, 45056')
        A(f's_lshr_b32 {sT[2]}, {sWAVE}, 1')
        A(f's_lshl_b32 {sT[2]}, {sT[2]}, 10')
        A(f's_add_u32 {sT[1]}, {sT[1]}, {sT[2]}')
        A(f's_lshl_b32 {sT[0]}, {sMT}, 2')
        A(f's_add_u32 {sT[0]}, {sT[0]}, {sRQ}')
        A(f's_mul_i32 {sT[0]}, {sT[0]}, {2*45056}')
        A(f's_add_u32 {sT[0]}, {sT[0]}, {sT[1]}')
        A(f's_add_u32 {sT[0]}, {sT[0]}, {HH}')
        A(f's_mov_b32 m0, {sT[1]}')
        for i in range(22):
            A(f'buffer_load_dwordx4 {vL16}, {WS}, {sT[0]} offen offset:{(i&1)*2048} lds'); vm.issue(('h', i))
            if i & 1:
                A(f's_add_u32 m0, m0, 4096')
                A(f's_add_u32 {sT[0]}, {sT[0]}, 4096')
        A(f'v_add_u32 v6, 45056, {vL16}')
        A(f'v_lshlrev_b32 v7, 10, {vL}')
        A(f'v_lshl_add_u32 v7, {vQ}, 4, v7')
        A(f's_lshl_b32 {sT[0]}, {sMT}, 2')
        A(f's_add_u32 {sT[0]}, {sT[0]}, {sRQ}')
        A(f's_lshl_b32 {sT[0]}, {sT[0]}, 15')
        A(f's_lshl_b32 {sT[1]}, {sCOL}, 6')
        A(f's_add_u32 {sT[0]}, {sT[0]}, {sT[1]}')
        A(f's_add_u32 {sT[1]}, {sT[0]}, {16*1024}')
        bar_before = {0: 1, 4: 4, 10: 9, 20: 15, 32: 21}
        PF = 3
        def fetch(k):
            if k in bar_before:
                vm.wait(('h', bar_before[k]))
                A('s_barrier')
            for lt in range(2):
                A(f'ds_read_b128 {a(RING + 8*(k%4) + 4*lt, 4)}, {"v6" if lt else vL16} offset:{k*1024}'); lg.issue(k)
        for k in range(PF): fetch(k)
        for k in range(44):
            lg.wait(k)
            for lt in range(2):
                for T in range(2):
                    d_ = v(ACC + 8*lt + 4*T, 4)
                    A(f'v_mfma_f32_16x16x32_bf16 {d_}, {self.wdreg(2*k+T)}, {a(RING + 8*(k%4) + 4*lt, 4)}, {"0" if k == 0 else d_}')
                    if lt == 0 and T == 0 and k + PF < 44: fetch(k + PF)
        U = 24
        for lt in range(2):
            for e in range(4):
                A(f'v_lshlrev_b32 {v(U+8*lt+2*e)}, 16, {v(X1R+4*lt+e)}')
                A(f'v_and_b32 {v(U+8*lt+2*e+1)}, 0xffff0000, {v(X1R+4*lt+e)}')
        for lt in range(2):
            for e in range(4):
                A(f'v_pk_fma_f32 {v(U+8*lt+2*e,2)}, {v(ACC+8*lt+2*e,2)}, {v(GB+2*e,2)}, {v(U+8*lt+2*e,2)}')
            for e in range(4):
                A(f'v_cvt_pk_bf16_f32 {v(40+4*lt+e)}, {v(U+8*lt+2*e)}, {v(U+8*lt+2*e+1)}')
            A(f'buffer_store_dwordx4 {v(40+4*lt,4)}, v7, {OUTS}, {sT[lt]} offen')
        self.endk()

    def endk(self):
        A = self.A
        if self.ts:
            A('s_waitcnt vmcnt(0)')
            A(f's_memrealtime s[{TS0+24}:{TS0+25}]')
            A('s_waitcnt lgkmcnt(0)')
            A(f's_lshl_b32 {sT[0]}, s2, 2')
            A(f's_add_u32 {sT[0]}, {sT[0]}, {sWAVE}')
            A(f's_lshl_b32 {sT[0]}, {sT[0]}, 6')
            A(f's_add_u32 {sT[0]}, {sT[0]}, {TSB}')
            self.setexec(1)
            for i in range(13):
                A(f'v_mov_b32 v6, s{TS0+2*i}')
                A(f'buffer_store_dword v6, off, {WS}, {sT[0]} offset:{4*i}')
                A('s_nop 1')
        A('s_endpgm')
        self.done = True

    def dump_lds(self):
        A = self.A
        A(f'v_lshlrev_b32 v6, 4, {vTID}')
        A(f'v_mov_b32 v7, v6')
        A(f's_mul_i32 {sT[0]}, s2, {LDS_BYTES}')
        A(f's_add_u32 {sT[0]}, {sT[0]}, {DBG}')
        for i in range(LDS_BYTES // 4096):
            A('ds_read_b128 v[8:11], v7')
            A('s_waitcnt lgkmcnt(0)')
            A(f'buffer_store_dwordx4 v[8:11], v7, {WS}, {sT[0]} offen')
            A('s_waitcnt vmcnt(0)')
            A('v_add_u32 v7, 4096, v7')
        A('s_cmp_lg_u32 s2, 0')
        A('s_cbranch_scc1 L_dump_end')
        A('s_sleep 127\ns_sleep 127\ns_sleep 127\ns_sleep 127')
        A(f'v_mov_b32 v12, {sTAG}')
        A(f'buffer_store_dword v12, off, {WS}, 0 offset:{EPOCH} sc1')
        A.label('L_dump_end')
        self.endk()

    def build(self):
        self.done = False
        self.prologue()
        self.wave0()
        self.wave1()
        self.hprep()
        self.kgen()
        for ph in (self.conv, self.scale_sync2, self.gemm1, self.epi1, self.gemm2):
            if not self.done: ph()
        self.A.label('L_end')
        self.A('s_endpgm')
        body = hazard.fix(self.A.text(), verbose=True)
        ref = open('adaLN_cond__ssm_conv_s4d__glu_gated_glu__prompt.s.ref').read().split('\n')
        hdr = [l for l in ref if l.startswith(';') and '@launch' not in l.split('Override')[0] and 'Harness parses' not in l and 'Override' not in l]
        head = '\n'.join(hdr) + f'\n; @launch grid=(256,1,1) block=(256,1,1) lds={LDS_BYTES}\n'
        return head + '.amdgcn_target "amdgcn-amd-amdhsa--gfx950"\n' + body + kernel_desc(NAME, 512, 102, 256) + '\n'


if __name__ == '__main__':
    import argparse
    ap = argparse.ArgumentParser()
    ap.add_argument('-o', default='k.s')
    ap.add_argument('--stop', default=None)
    ap.add_argument('--ts', action='store_true')
    args = ap.parse_args()
    open(args.o, 'w').write(Gen(args.stop, args.ts).build())
```
